```python
import torch

def _softmax(x, axis=-1):
    return torch.softmax(x, dim=axis)
def _gelu(x):
    return torch.nn.functional.gelu(x, approximate="tanh")
def _silu(x):
    return torch.nn.functional.silu(x)
def _sigmoid(x):
    return torch.sigmoid(x)
def _layernorm(x, axis=-1, eps=1e-5):
    m = x.mean(dim=axis, keepdim=True)
    v = x.var(dim=axis, keepdim=True, unbiased=False)
    return (x - m) / torch.sqrt(v + eps)
def _scatter_add(tgt, idx, src, axis=0):
    return tgt.clone().index_add_(axis, idx, src)
def _segment_sum(src, seg, n):
    out = torch.zeros((n,) + src.shape[1:], dtype=src.dtype)
    return out.index_add_(0, seg, src)
def _pad(x, pw):
    flat = tuple(v for pair in reversed(pw) for v in pair)
    return torch.nn.functional.pad(x, flat)

kernel_name = 'interleave_layers__ssm_conv_s5__ssm_conv_h3__prompt'

def setup_inputs():

    _w = (lambda a: (lambda t: t.to(torch.bfloat16) if t.is_floating_point() else t)(torch.as_tensor(a)))
    def _A_setup():
        B, S, D = 1, 2048, 576
        P = D
        Lambda_re = -0.5 * (lambda _x: torch.exp(torch.as_tensor(_x)))((lambda *s: torch.randn(*s, dtype=torch.bfloat16) * 0.2)(P))
        Lambda_im = (lambda *s: torch.randn(*s, dtype=torch.bfloat16) * 0.4)(P) * 1.0
        B_re = (lambda *s: torch.randn(*s, dtype=torch.bfloat16) * 0.2)(P, D) * (D ** -0.5)
        B_im = (lambda *s: torch.randn(*s, dtype=torch.bfloat16) * 0.2)(P, D) * (D ** -0.5)
        C_re = (lambda *s: torch.randn(*s, dtype=torch.bfloat16) * 0.2)(D, P) * (P ** -0.5)
        C_im = (lambda *s: torch.randn(*s, dtype=torch.bfloat16) * 0.2)(D, P) * (P ** -0.5)
        log_dt = (lambda *s: torch.randn(*s, dtype=torch.bfloat16) * 0.2)(P) * 0.3 - 2.0
        Dskip = (lambda *s: torch.randn(*s, dtype=torch.bfloat16) * 0.05)(D)
        return {
            "x": _w((lambda *s: torch.randn(*s, dtype=torch.bfloat16) * 0.05)(B, S, D)),
            "Lambda_re": _w(Lambda_re),
            "Lambda_im": _w(Lambda_im),
            "B_re": _w(B_re),
            "B_im": _w(B_im),
            "C_re": _w(C_re),
            "C_im": _w(C_im),
            "log_dt": _w(log_dt),
            "Dskip": _w(Dskip),
        }
    _A_in = _A_setup()

    def _B_setup():
        B, S, D = 1, 2048, 576
        ks = 4
        return {
            "q": _w((lambda *s: torch.randn(*s, dtype=torch.bfloat16) * 0.05)(B, S, D)),
            "k": _w((lambda *s: torch.randn(*s, dtype=torch.bfloat16) * 0.4)(B, S, D)),
            "v": _w((lambda *s: torch.randn(*s, dtype=torch.bfloat16) * 0.4)(B, S, D)),
            "shift_k": _w((lambda *s: torch.randn(*s, dtype=torch.bfloat16) * 0.4)(D, ks) * 0.5),
            "ssm_k": _w((lambda *s: torch.randn(*s, dtype=torch.bfloat16) * 0.4)(D, S) * (1.0 / S ** 0.5)),
            "ssm_D": _w((lambda *s: torch.randn(*s, dtype=torch.bfloat16) * 0.4)(D)),
        }
    _B_in = _B_setup()

    return {
        "A_x": _A_in["x"],
        "A_Lambda_re": _A_in["Lambda_re"],
        "A_Lambda_im": _A_in["Lambda_im"],
        "A_B_re": _A_in["B_re"],
        "A_B_im": _A_in["B_im"],
        "A_C_re": _A_in["C_re"],
        "A_C_im": _A_in["C_im"],
        "A_log_dt": _A_in["log_dt"],
        "A_Dskip": _A_in["Dskip"],
        "B_q": _B_in["q"],
        "B_k": _B_in["k"],
        "B_v": _B_in["v"],
        "B_shift_k": _B_in["shift_k"],
        "B_ssm_k": _B_in["ssm_k"],
        "B_ssm_D": _B_in["ssm_D"],
    }

def reference(A_x, A_Lambda_re, A_Lambda_im, A_B_re, A_B_im, A_C_re, A_C_im, A_log_dt, A_Dskip, B_q, B_k, B_v, B_shift_k, B_ssm_k, B_ssm_D):
    def _A_ref(x, Lambda_re, Lambda_im, B_re, B_im, C_re, C_im, log_dt, Dskip):
        Bsz, L, H = x.shape
        Lam = Lambda_re + 1j * Lambda_im
        Bmat = B_re + 1j * B_im
        Cmat = C_re + 1j * C_im
        dt = torch.exp(log_dt)
        Lam_bar = torch.exp(dt * Lam)
        B_bar = ((Lam_bar - 1.0) / Lam)[:, None] * Bmat
        Bu = torch.einsum("bld,pd->blp", x + 0j, B_bar)
        h = torch.zeros_like(Bu[:, 0, :])
        hs = []
        for t in range(L):
            h = Lam_bar[None, :] * h + Bu[:, t, :]
            hs.append(h)
        hseq = torch.stack(hs, 1)
        y = 2.0 * torch.einsum("blp,dp->bld", hseq, Cmat).real + x * Dskip[None, None, :]
        return y

    def _B_ref(q, k, v, shift_k, ssm_k, ssm_D):
        B, S, D = q.shape
        ks = shift_k.shape[-1]
        k_pad = _pad(k, ((0, 0), (ks - 1, 0), (0, 0)))
        k_shift = torch.zeros_like(k)
        for t in range(ks):
            k_shift = k_shift + k_pad[:, t:t + S, :] * shift_k[:, ks - 1 - t][None, None, :]
        kv = k_shift * v
        L = 2 * S
        kv_pad = _pad(kv, ((0, 0), (0, S), (0, 0)))
        kf_pad = _pad(ssm_k, ((0, 0), (0, S)))
        kv_f = (lambda x, axes=(-2,-1): torch.fft.rfft2(x.float(), dim=axes))(kv_pad[:, None, :, :], axes=(1, 2))
        kf_f = (lambda x, axes=(-2,-1): torch.fft.rfft2(x.float(), dim=axes))(kf_pad[:, None, :], axes=(1, 2))
        kf_f = (lambda x, *d: x.permute(*d))(kf_f, 1, 2, 0)
        y_f = kv_f * kf_f[None, :, :, :]
        y = (lambda x, s, axes=(-2,-1): torch.fft.irfft2(x, s=s, dim=axes).to(torch.bfloat16))(y_f, (1, L), axes=(1, 2))[:, 0, :S, :]
        y = y + kv * ssm_D[None, None, :]
        return q * y

    x = A_x
    x = x + _A_ref(_layernorm(x, axis=-1), A_Lambda_re, A_Lambda_im, A_B_re, A_B_im, A_C_re, A_C_im, A_log_dt, A_Dskip)
    x = x + _B_ref(_layernorm(x, axis=-1), B_k, B_v, B_shift_k, B_ssm_k, B_ssm_D)
    x = x + _A_ref(_layernorm(x, axis=-1), A_Lambda_re, A_Lambda_im, A_B_re, A_B_im, A_C_re, A_C_im, A_log_dt, A_Dskip)
    x = x + _B_ref(_layernorm(x, axis=-1), B_k, B_v, B_shift_k, B_ssm_k, B_ssm_D)
    return x
```

```python
import re

def v(n, c=1): return f"v{n}" if c == 1 else f"v[{n}:{n+c-1}]"
def a(n, c=1): return f"a{n}" if c == 1 else f"a[{n}:{n+c-1}]"
def s(n, c=1): return f"s{n}" if c == 1 else f"s[{n}:{n+c-1}]"

_REG = re.compile(r"^-?\|?(?:abs\()?([vas])(?:(\d+)|\[(\d+):(\d+)\])\)?\|?$")
def regs_of(tok):
    tok = tok.strip()
    if tok == "vcc": return {("s", 106), ("s", 107)}
    if tok == "vcc_lo": return {("s", 106)}
    if tok == "vcc_hi": return {("s", 107)}
    if tok == "exec": return {("s", 126), ("s", 127)}
    if tok == "m0": return {("s", 124)}
    m = _REG.match(tok)
    if not m: return set()
    k = m.group(1)
    if m.group(2) is not None: return {(k, int(m.group(2)))}
    return {(k, i) for i in range(int(m.group(3)), int(m.group(4)) + 1)}

TRANS = ("v_exp_f32", "v_log_f32", "v_rcp_f32", "v_rsq_f32", "v_sqrt_f32", "v_sin_f32", "v_cos_f32", "v_rcp_iflag_f32")

class Ins:
    def __init__(self, text):
        self.text = text
        t = text.split(";")[0].strip()
        self.label = None; self.op = None
        self.dst = set(); self.src = set(); self.ops = []
        self.kind = "other"
        if t.endswith(":"):
            self.label = t[:-1]; self.kind = "label"; return
        if t.startswith(".") or not t:
            self.kind = "dir"; return
        parts = t.split(None, 1)
        op = parts[0]; self.op = op
        rest = parts[1] if len(parts) > 1 else ""
        toks = [x.strip() for x in rest.split(",")] if rest else []
        ops = []; depth = 0; cur = ""
        for ch in rest:
            if ch == "[": depth += 1
            if ch == "]": depth -= 1
            if ch == "," and depth == 0:
                ops.append(cur.strip()); cur = ""
            else: cur += ch
        if cur.strip(): ops.append(cur.strip())
        mods = ""
        if ops:
            sp = ops[-1].split(None, 1)
            ops[-1] = sp[0]; mods = sp[1] if len(sp) > 1 else ""
        self.ops = ops; self.mods = mods
        R = [regs_of(o) for o in ops]
        base = re.sub(r"_(e32|e64|dpp|sdwa)$", "", op)
        self.base = base
        self.dpp = op.endswith("_dpp") or "row_" in mods or "quad_perm" in mods
        if op.startswith("v_mfma"):
            self.kind = "mfma"; self.dst = R[0]; self.srcA = R[1]; self.srcB = R[2]; self.srcC = R[3]
            self.src = R[1] | R[2] | R[3]
            self.passes = 4 if "16x16x32" in op or "16x16x16" in op else 8
        elif op.startswith("v_"):
            self.kind = "valu"
            self.trans = base in TRANS
            self.dot = base.startswith("v_dot")
            if base.startswith("v_permlane") and "swap" in base:
                self.dst = R[0] | R[1]; self.src = R[0] | R[1]
            elif base.startswith("v_cmp"):
                self.dst = R[0]; self.src = set().union(*R[1:])
            elif base in ("v_add_co_u32", "v_sub_co_u32", "v_addc_co_u32", "v_subb_co_u32", "v_mad_u64_u32", "v_div_scale_f32"):
                self.dst = R[0] | R[1]; self.src = set().union(*R[2:])
            else:
                self.dst = R[0]; self.src = set().union(*R[1:]) if len(R) > 1 else set()
                if base in ("v_fmac_f32", "v_dot2c_f32_bf16", "v_pk_fmac_f16", "v_writelane_b32") or self.dpp:
                    self.src |= R[0]
                if base == "v_cndmask_b32" and len(ops) == 3: self.src |= regs_of("vcc")
        elif op.startswith("ds_"):
            self.kind = "ds"
            if op.startswith("ds_read") or op.startswith("ds_bpermute") or op.startswith("ds_permute") or op.startswith("ds_swizzle"):
                self.dst = R[0]; self.src = set().union(*R[1:])
            else:
                self.src = set().union(*R)
        elif op.startswith("buffer_") or op.startswith("global_"):
            self.kind = "vmem"
            self.lds = (" lds" in " " + mods) or "_lds_" in op
            if op in ("buffer_wbl2", "buffer_inv"): pass
            elif "load" in op and not self.lds:
                self.dst = R[0]; self.src = set().union(*R[1:])
                if "d16" in op: self.src |= R[0]
            else:
                self.src = set().union(*R) if R else set()
                if "atomic" in op and "sc0" in mods: self.dst = R[0]
            self.wide_store = ("store" in op) and (op.endswith("x4") or op.endswith("x3"))
            if self.wide_store:
                self.data = R[0] if op.startswith("buffer_") else R[1]
        elif op.startswith("s_"):
            self.kind = "salu"
            if op == "s_nop": self.kind = "nop"; self.n = int(ops[0], 0) + 1
            elif op.startswith("s_cbranch") or op == "s_branch": self.kind = "branch"; self.target = ops[0]
            elif op.startswith("s_cmp") or op in ("s_waitcnt", "s_barrier", "s_endpgm", "s_sleep", "s_setprio"):
                self.src = set().union(*R) if R else set()
            else:
                self.dst = R[0] if R else set(); self.src = set().union(*R[1:]) if len(R) > 1 else set()
                if "saveexec" in op: self.dst |= regs_of("exec")
    def states(self):
        if self.kind in ("label", "dir"): return 0
        if self.kind == "nop": return self.n
        return 1

def need(p, c):
    n = 0
    vr = lambda S: {r for r in S if r[0] in "va"}
    sr = lambda S: {r for r in S if r[0] == "s"}
    if p.kind == "valu":
        pd = vr(p.dst); ps = sr(p.dst)
        if c.kind == "mfma" and pd & c.src: n = max(n, 3 if p.dot else 2)
        if c.kind == "valu":
            if p.trans and not c.trans and pd & c.src: n = max(n, 1)
            if p.trans and c.trans and pd & c.src: n = max(n, 1)
            if c.dpp and pd & c.src: n = max(n, 2)
            if c.base.startswith("v_permlane") and pd & c.src: n = max(n, 2)
            if c.base in ("v_readlane_b32", "v_readfirstlane_b32") and pd & c.src: n = max(n, 1)
            if ps & c.src: n = max(n, 4 if c.base in ("v_readlane_b32", "v_writelane_b32") else 2)
            if p.dot and (pd & (c.src | c.dst)):
                same_c = c.dot and c.base == p.base and not (pd & (regs_of(c.ops[1]) | regs_of(c.ops[2])))
                if not same_c: n = max(n, 3)
            if "sdwa" in p.op and pd & c.src: n = max(n, 1)
        if p.dot and c.kind in ("ds", "vmem") and pd & (c.src | c.dst): n = max(n, 3)
        if c.kind == "vmem" and ps & c.src: n = max(n, 5)
        if c.kind in ("salu", "branch") and ps & c.src: n = max(n, 1)
    elif p.kind == "mfma":
        big = {4: 8, 8: 12}[p.passes]; ov = {4: 6, 8: 10}[p.passes]; war = {4: 3, 8: 7}[p.passes]
        if c.kind == "mfma":
            if p.dst & (c.srcA | c.srcB): n = max(n, big)
            if p.dst & c.srcC and not (p.dst == c.srcC and p.passes == c.passes): n = max(n, ov)
            if p.dst & c.dst and not (p.dst == c.dst and p.dst == c.srcC): n = max(n, ov)
        elif c.kind in ("valu", "ds", "vmem"):
            if p.dst & (c.src | c.dst): n = max(n, big)
            if c.kind == "valu" and p.srcC & c.dst: n = max(n, war)
    elif p.kind == "salu":
        if ("s", 124) in p.dst and c.kind == "vmem" and getattr(c, "lds", False): n = max(n, 1)
    elif p.kind == "vmem":
        if getattr(p, "wide_store", False) and p.data & c.dst:
            n = max(n, 2 if c.kind in ("valu", "mfma") else 1)
    return n

class Asm:
    def __init__(self):
        self.L = []
        self.vm = 0
        self.lg = 0
        self.uid = 0
        self.nocount = 0
    def __call__(self, text):
        for line in text.strip().split("\n"):
            line = line.strip()
            if not line: continue
            i = Ins(line); self.L.append(i)
            if i.kind == "vmem" and not self.nocount: self.vm += 1
            if i.kind == "ds" and not self.nocount: self.lg += 1
    def label(self, base="L"):
        self.uid += 1; return f"{base}_{self.uid}"
    def vt(self): return self.vm
    def lt(self): return self.lg
    def wv(self, t=None):
        n = 0 if t is None else min(63, self.vm - t)
        self(f"s_waitcnt vmcnt({n})")
    def wl(self, t=None):
        n = 0 if t is None else min(15, self.lg - t)
        self(f"s_waitcnt lgkmcnt({n})")
    def _req(self, hist, c):
        d = 0; req = 0
        for p in reversed(hist):
            if d >= 14: break
            if p.kind in ("label", "dir"): continue
            n = need(p, c)
            if n > d: req = max(req, n - d)
            d += p.states()
        return req
    def finalize(self):
        out = []
        for i in self.L:
            if i.kind not in ("label", "dir", "nop"):
                r = self._req(out[-40:], i)
                while r > 0:
                    k = min(r, 16); out.append(Ins(f"s_nop {k-1}")); r -= k
            out.append(i)
        changed = True
        while changed:
            changed = False
            labels = {x.label: n for n, x in enumerate(out) if x.kind == "label"}
            for n, x in enumerate(out):
                if x.kind == "branch" and x.target in labels:
                    hist = out[max(0, n-40):n+1]
                    t = labels[x.target]; worst = 0; cnt = 0
                    for y in out[t:t+40]:
                        if y.kind not in ("label", "dir", "nop"):
                            worst = max(worst, self._req(hist, y))
                        hist = hist + [y]; cnt += y.states()
                        if cnt > 14 or y.op in ("s_branch", "s_endpgm"): break
                    if worst > 0:
                        out.insert(n, Ins(f"s_nop {worst-1}")); changed = True; break
        return "\n".join(("" if x.kind == "label" or x.kind == "dir" else "    ") + x.text for x in out) + "\n"

def kernel_desc(name, vgpr=256, sgpr=102, accum=256):
    return f""".p2align 6
.amdhsa_kernel {name}
  .amdhsa_next_free_vgpr {vgpr}
  .amdhsa_next_free_sgpr {sgpr}
  .amdhsa_accum_offset {accum}
  .amdhsa_group_segment_fixed_size 0
  .amdhsa_kernarg_size 144
  .amdhsa_user_sgpr_count 2
  .amdhsa_user_sgpr_kernarg_segment_ptr 1
  .amdhsa_system_sgpr_workgroup_id_x 1
.end_amdhsa_kernel
"""
```

```python
import sys
from dsl import *
ROUND_U = int(sys.argv[2]) if len(sys.argv) > 2 else 0
ROUND_H = int(sys.argv[3]) if len(sys.argv) > 3 else 0
NEMPTY = int(sys.argv[4]) if len(sys.argv) > 4 else 0
U, BU, X, KV, G = 0, 8<<20, 24<<20, 32<<20, 40<<20
kernels = []
def start(name, ngroups):
    A = Asm()
    A(f".globl {name}\n.p2align 8\n.type {name},@function\n{name}:")
    A(f"s_cmp_ge_u32 s2, {ngroups}\ns_cbranch_scc1 {name}_end")
    A("s_load_dwordx16 s[16:31], s[0:1], 0\ns_load_dwordx16 s[32:47], s[0:1], 64\ns_load_dwordx4 s[48:51], s[0:1], 128\ns_waitcnt lgkmcnt(0)")
    A("s_mov_b32 s4, s50\ns_mov_b32 s5, s51\ns_mov_b32 s6, 0x10000000\ns_mov_b32 s7, 0x20000")
    return A
def end(A, name, ngroups):
    A(f"{name}_end:\ns_endpgm")
    kernels.append((name, ngroups, A.finalize()))
P = lambda i: f"s[{16+2*i}:{17+2*i}]"
def rbf(A, r):
    A(f"v_cvt_pk_bf16_f32 {v(r)}, {v(r)}, 0\nv_lshlrev_b32 {v(r)}, 16, {v(r)}")
def wsum(A, r, t):
    for off in (0x041F, 0x081F, 0x101F, 0x201F, 0x401F):
        A(f"ds_swizzle_b32 {v(t)}, {v(r)} offset:{off}\ns_waitcnt lgkmcnt(0)\nv_add_f32 {v(r)}, {v(r)}, {v(t)}")
    A(f"v_mov_b32 {v(t)}, {v(r)}\nv_permlane32_swap_b32 {v(r)}, {v(t)}\nv_add_f32 {v(r)}, {v(r)}, {v(t)}")
def row_ids(A):
    A("v_and_b32 v1, 63, v0\nv_lshrrev_b32 v2, 6, v0\ns_lshl_b32 s3, s2, 2\nv_add_u32 v2, s3, v2\nv_mul_u32_u24 v3, 576, v2\nv_add_u32 v3, v3, v1")
def td_ids(A):
    A("s_lshl_b32 s3, s2, 8\nv_add_u32 v1, s3, v0\nv_lshrrev_b32 v2, 6, v1\ns_mov_b32 s3, 0x1c71c71d\nv_mul_hi_u32 v2, v2, s3\nv_mul_u32_u24 v3, 576, v2\nv_sub_u32 v3, v1, v3")
def stats(A, x0, m, r, t, bf):
    A(f"v_mov_b32 {v(m)}, {v(x0)}")
    for i in range(1, 9): A(f"v_add_f32 {v(m)}, {v(m)}, {v(x0+i)}")
    wsum(A, m, t)
    A(f"v_mul_f32 {v(m)}, 0x3ae38e39, {v(m)}")
    A(f"v_mov_b32 {v(r)}, 0")
    for i in range(9): A(f"v_sub_f32 {v(t)}, {v(x0+i)}, {v(m)}\nv_fmac_f32 {v(r)}, {v(t)}, {v(t)}")
    wsum(A, r, t)
    A(f"v_mul_f32 {v(r)}, 0x3ae38e39, {v(r)}")
    if bf: rbf(A, m); rbf(A, r)
    A(f"v_add_f32 {v(r)}, 0x3727c5ac, {v(r)}")
    if bf: rbf(A, r)
    A(f"v_sqrt_f32 {v(r)}, {v(r)}")
    if bf: rbf(A, r)
    A(f"v_rcp_f32 {v(r)}, {v(r)}")
def load_dskip(A, d0):
    A("v_lshlrev_b32 v6, 1, v1")
    for i in range(9): A(f"global_load_ushort {v(d0+i)}, v6, {P(8)} offset:{128*i}")
A = start("ln1_kernel", 512); row_ids(A)
A("v_lshlrev_b32 v4, 1, v3\nv_lshlrev_b32 v5, 2, v3")
for i in range(9): A(f"global_load_ushort {v(10+i)}, v4, {P(0)} offset:{128*i}")
load_dskip(A, 20)
A("s_waitcnt vmcnt(0)")
for i in range(9): A(f"v_lshlrev_b32 {v(10+i)}, 16, {v(10+i)}\nv_lshlrev_b32 {v(20+i)}, 16, {v(20+i)}")
stats(A, 10, 30, 31, 32, True)
A(f"s_mov_b32 s8, {U}\ns_mov_b32 s9, {X}")
for i in range(9):
    A(f"v_sub_f32 v33, {v(10+i)}, v30"); rbf(A, 33)
    A("v_mul_f32 v33, v33, v31"); rbf(A, 33)
    A(f"buffer_store_dword v33, v5, s[4:7], s8 offen offset:{256*i}")
    A(f"v_mul_f32 v34, v33, {v(20+i)}"); rbf(A, 34)
    A(f"v_add_f32 v34, v34, {v(10+i)}")
    A(f"buffer_store_dword v34, v5, s[4:7], s9 offen offset:{256*i}")
end(A, "ln1_kernel", 512)
def lam_consts(A, pv):
    A(f"v_lshlrev_b32 v44, 1, {v(pv)}")
    A(f"global_load_ushort v45, v44, {P(1)}\nglobal_load_ushort v46, v44, {P(2)}\nglobal_load_ushort v47, v44, {P(7)}\ns_waitcnt vmcnt(0)")
    A("v_lshlrev_b32 v45, 16, v45\nv_lshlrev_b32 v46, 16, v46\nv_lshlrev_b32 v47, 16, v47")
    A("v_mul_f32 v47, 0x3fb8aa3b, v47\nv_exp_f32 v47, v47"); rbf(A, 47)
    A("v_mul_f32 v48, v47, v45\nv_mul_f32 v49, v47, v46")
    A("v_mul_f32 v48, 0x3fb8aa3b, v48\nv_exp_f32 v48, v48")
    A("v_mul_f32 v49, 0.15915494, v49\nv_rndne_f32 v50, v49\nv_sub_f32 v49, v49, v50\nv_cos_f32 v40, v49\nv_sin_f32 v41, v49")
    A("v_mul_f32 v40, v40, v48\nv_mul_f32 v41, v41, v48")
    A("v_subrev_f32 v48, 1.0, v40")
    A("v_mul_f32 v49, v45, v45\nv_fmac_f32 v49, v46, v46\nv_rcp_f32 v49, v49")
    A("v_mul_f32 v42, v48, v45\nv_fmac_f32 v42, v41, v46\nv_mul_f32 v42, v42, v49")
    A("v_mul_f32 v43, v41, v45\nv_fma_f32 v43, -v48, v46, v43\nv_mul_f32 v43, v43, v49")
A = start("g1_kernel", 4608); td_ids(A); lam_consts(A, 3)
A("v_mul_u32_u24 v4, 1152, v3\nv_mul_u32_u24 v5, 2304, v2\nv_mov_b32 v6, 0\nv_mov_b32 v7, 0\ns_mov_b32 s8, 0")
A("g1_loop:")
A(f"global_load_dwordx4 v[8:11], v4, {P(3)}\nglobal_load_dwordx4 v[12:15], v4, {P(4)}")
A("buffer_load_dwordx4 v[16:19], v5, s[4:7], 0 offen\nbuffer_load_dwordx4 v[20:23], v5, s[4:7], 0 offen offset:16\ns_waitcnt vmcnt(0)")
for i in range(4):
    for base, acc in ((8, 6), (12, 7)):
        A(f"v_lshlrev_b32 v24, 16, {v(base+i)}\nv_fmac_f32 {v(acc)}, v24, {v(16+2*i)}\nv_and_b32 v24, 0xffff0000, {v(base+i)}\nv_fmac_f32 {v(acc)}, v24, {v(17+2*i)}")
A("v_add_u32 v4, 16, v4\nv_add_u32 v5, 32, v5\ns_add_u32 s8, s8, 1\ns_cmp_lt_u32 s8, 72\ns_cbranch_scc1 g1_loop")
A("v_mul_f32 v8, v42, v6\nv_fma_f32 v8, -v43, v7, v8\nv_mul_f32 v9, v42, v7\nv_fmac_f32 v9, v43, v6")
A(f"v_lshlrev_b32 v4, 3, v1\ns_mov_b32 s9, {BU}\nbuffer_store_dwordx2 v[8:9], v4, s[4:7], s9 offen")
end(A, "g1_kernel", 4608)
A = start("scan_kernel", 3)
A("s_lshl_b32 s3, s2, 8\nv_add_u32 v1, s3, v0\nv_cmp_gt_u32 vcc, 576, v1\ns_and_saveexec_b64 s[10:11], vcc\ns_cbranch_execz scan_kernel_end")
lam_consts(A, 1)
A(f"v_lshlrev_b32 v4, 3, v1\nv_mov_b32 v6, 0\nv_mov_b32 v7, 0\ns_mov_b32 s8, 0\ns_mov_b32 s9, {BU}")
A("scan_loop:")
for i in range(8):
    A(f"s_add_u32 s12, s9, {4608*i}\nbuffer_load_dwordx2 v[{10+2*i}:{11+2*i}], v4, s[4:7], s12 offen")
A("s_waitcnt vmcnt(0)")
for i in range(8):
    r, m = 10+2*i, 11+2*i
    A(f"v_fmac_f32 {v(r)}, v40, v6\nv_fma_f32 {v(r)}, -v41, v7, {v(r)}\nv_fmac_f32 {v(m)}, v40, v7\nv_fmac_f32 {v(m)}, v41, v6\nv_mov_b32 v6, {v(r)}\nv_mov_b32 v7, {v(m)}")
    if ROUND_H == 1: rbf(A, r); rbf(A, m)
    if ROUND_H >= 2:
        sh = 16 + ROUND_H
        for q in (r, m): A(f"v_add_u32 {v(q)}, {1 << (sh-1)}, {v(q)}\nv_and_b32 {v(q)}, {(0xffffffff << sh) & 0xffffffff:#x}, {v(q)}")
    A(f"s_add_u32 s12, s9, {4608*i}\nbuffer_store_dwordx2 v[{r}:{m}], v4, s[4:7], s12 offen")
A(f"s_add_u32 s9, s9, {4608*8}\ns_add_u32 s8, s8, 1\ns_cmp_lt_u32 s8, 256\ns_cbranch_scc1 scan_loop")
end(A, "scan_kernel", 3)
A = start("g2_kernel", 4608); td_ids(A)
A(f"v_mul_u32_u24 v4, 1152, v3\nv_mul_u32_u24 v5, 4608, v2\nv_mov_b32 v6, 0\ns_mov_b32 s8, 0\ns_mov_b32 s9, {BU}")
A("g2_loop:")
A(f"global_load_dwordx4 v[8:11], v4, {P(5)}\nglobal_load_dwordx4 v[12:15], v4, {P(6)}")
for i in range(4): A(f"buffer_load_dwordx4 v[{16+4*i}:{19+4*i}], v5, s[4:7], s9 offen offset:{16*i}")
A("s_waitcnt vmcnt(0)")
for i in range(4):
    A(f"v_lshlrev_b32 v34, 16, {v(8+i)}\nv_fmac_f32 v6, v34, {v(16+4*i)}\nv_and_b32 v34, 0xffff0000, {v(8+i)}\nv_fmac_f32 v6, v34, {v(18+4*i)}")
    A(f"v_lshlrev_b32 v34, 16, {v(12+i)}\nv_fma_f32 v6, -v34, {v(17+4*i)}, v6\nv_and_b32 v34, 0xffff0000, {v(12+i)}\nv_fma_f32 v6, -v34, {v(19+4*i)}, v6")
A("v_add_u32 v4, 16, v4\nv_add_u32 v5, 64, v5\ns_add_u32 s8, s8, 1\ns_cmp_lt_u32 s8, 72\ns_cbranch_scc1 g2_loop")
A(f"v_lshlrev_b32 v4, 2, v1\ns_mov_b32 s9, {X}\nbuffer_load_dword v8, v4, s[4:7], s9 offen\ns_waitcnt vmcnt(0)\nv_fmac_f32 v8, 2.0, v6\nbuffer_store_dword v8, v4, s[4:7], s9 offen")
end(A, "g2_kernel", 4608)
A = start("kv_kernel", 4608); td_ids(A)
A(f"s_mov_b32 s8, s36\ns_mov_b32 s9, s37\ns_mov_b32 s10, {2048*1152}\ns_mov_b32 s11, 0x20000")
A("v_lshlrev_b32 v4, 1, v1")
for i in range(4): A(f"v_subrev_u32 v5, {1152*(3-i)}, v4\nbuffer_load_ushort {v(10+i)}, v5, s[8:11], 0 offen")
A(f"global_load_ushort v14, v4, {P(11)}\nv_lshlrev_b32 v5, 3, v3\nglobal_load_dwordx2 v[16:17], v5, {P(12)}\ns_waitcnt vmcnt(0)")
for i in range(5): A(f"v_lshlrev_b32 {v(10+i)}, 16, {v(10+i)}")
A("v_lshlrev_b32 v20, 16, v16\nv_and_b32 v21, 0xffff0000, v16\nv_lshlrev_b32 v22, 16, v17\nv_and_b32 v23, 0xffff0000, v17")
A("v_mul_f32 v24, v10, v23"); rbf(A, 24)
for i in range(1, 4):
    A(f"v_mul_f32 v25, {v(10+i)}, {v(23-i)}"); rbf(A, 25)
    A("v_add_f32 v24, v24, v25"); rbf(A, 24)
A("v_mul_f32 v24, v24, v14"); rbf(A, 24)
A(f"v_lshlrev_b32 v4, 2, v1\ns_mov_b32 s12, {KV}\nbuffer_store_dword v24, v4, s[4:7], s12 offen")
end(A, "kv_kernel", 4608)
A = start("conv_kernel", 4608); td_ids(A)
A("v_readfirstlane_b32 s8, v2")
A(f"v_lshlrev_b32 v4, 2, v3\nv_lshlrev_b32 v5, 12, v3\nv_lshlrev_b32 v7, 1, v2\nv_add_u32 v5, v5, v7\nv_mov_b32 v6, 0\ns_mov_b32 s9, {KV}\ns_mov_b32 s10, 0")
A("conv_loop:")
A(f"buffer_load_dword v8, v4, s[4:7], s9 offen\nglobal_load_ushort v9, v5, {P(13)}\ns_waitcnt vmcnt(0)\nv_lshlrev_b32 v9, 16, v9\nv_fmac_f32 v6, v8, v9")
A("v_subrev_u32 v5, 2, v5\ns_add_u32 s9, s9, 2304\ns_add_u32 s10, s10, 1\ns_cmp_le_u32 s10, s8\ns_cbranch_scc1 conv_loop")
rbf(A, 6)
A(f"v_lshlrev_b32 v5, 1, v3\nglobal_load_ushort v9, v5, {P(14)}\ns_waitcnt vmcnt(0)\nv_lshlrev_b32 v9, 16, v9\nv_mul_f32 v8, v8, v9"); rbf(A, 8)
A("v_add_f32 v6, v6, v8"); rbf(A, 6)
A(f"v_lshlrev_b32 v4, 2, v1\ns_mov_b32 s12, {G}\nbuffer_store_dword v6, v4, s[4:7], s12 offen")
end(A, "conv_kernel", 4608)
for name, last in (("ln2_kernel", False), ("ln4_kernel", True)):
    A = start(name, 512); row_ids(A)
    A(f"v_lshlrev_b32 v5, 2, v3\ns_mov_b32 s8, {U}\ns_mov_b32 s9, {X}\ns_mov_b32 s10, {G}")
    for i in range(9): A(f"buffer_load_dword {v(10+i)}, v5, s[4:7], s9 offen offset:{256*i}\nbuffer_load_dword {v(40+i)}, v5, s[4:7], s10 offen offset:{256*i}")
    load_dskip(A, 20)
    A("s_waitcnt vmcnt(0)")
    for i in range(9): A(f"v_lshlrev_b32 {v(20+i)}, 16, {v(20+i)}")
    stats(A, 10, 30, 31, 32, False)
    for i in range(9): A(f"v_sub_f32 v33, {v(10+i)}, v30\nv_mul_f32 v33, v33, v31\nv_fmac_f32 {v(10+i)}, v33, {v(40+i)}")
    if last:
        for i in range(9): A(f"global_store_dword v5, {v(10+i)}, s[46:47] offset:{256*i}")
    else:
        stats(A, 10, 30, 31, 32, False)
        for i in range(9):
            A(f"v_sub_f32 v33, {v(10+i)}, v30\nv_mul_f32 v33, v33, v31\nv_fma_f32 v34, v33, {v(20+i)}, {v(10+i)}")
            if ROUND_U: rbf(A, 33)
            A(f"buffer_store_dword v33, v5, s[4:7], s8 offen offset:{256*i}\nbuffer_store_dword v34, v5, s[4:7], s9 offen offset:{256*i}")
    end(A, name, 512)
A = Asm(); A(".globl empty_kernel\n.p2align 8\n.type empty_kernel,@function\nempty_kernel:\ns_endpgm"); kernels.append(("empty_kernel", 256, A.finalize()))
ng = {n: g for n, g, _ in kernels}
order = ["ln1", "kv", "conv", "g1", "scan", "g2", "ln2", "g1", "scan", "g2", "ln4"] + ["empty"] * NEMPTY
txt = "".join(f"; @launch kernel={k}_kernel grid=({ng[k+'_kernel']},1,1) block=(256,1,1) lds=0\n" for k in order)
txt += '.amdgcn_target "amdgcn-amd-amdhsa--gfx950"\n.text\n'
used = [k for k in kernels if k[0][:-7] in order]
txt += "".join(k[2] for k in used)
txt += '.section .rodata,"a"\n' + "".join(kernel_desc(k[0], 64, 64, 64) for k in used)
open(sys.argv[1], "w").write(txt)
```
